```python
import torch

def _softmax(x, axis=-1):
    return torch.softmax(x, dim=axis)
def _gelu(x):
    return torch.nn.functional.gelu(x, approximate="tanh")
def _silu(x):
    return torch.nn.functional.silu(x)
def _sigmoid(x):
    return torch.sigmoid(x)
def _layernorm(x, axis=-1, eps=1e-5):
    m = x.mean(dim=axis, keepdim=True)
    v = x.var(dim=axis, keepdim=True, unbiased=False)
    return (x - m) / torch.sqrt(v + eps)
def _scatter_add(tgt, idx, src, axis=0):
    return tgt.clone().index_add_(axis, idx, src)
def _segment_sum(src, seg, n):
    out = torch.zeros((n,) + src.shape[1:], dtype=src.dtype)
    return out.index_add_(0, seg, src)
def _pad(x, pw):
    flat = tuple(v for pair in reversed(pw) for v in pair)
    return torch.nn.functional.pad(x, flat)

kernel_name = 'standalone__cross_network_dcn_v2__recsys'

def setup_inputs():

    _w = (lambda a: (lambda t: t.to(torch.bfloat16) if t.is_floating_point() else t)(torch.as_tensor(a)))
    B, F, D, L = 16384, 100, 16, 3
    Din = min(F * D, 512)
    R = max(Din // 4, 2)
    sc = Din ** -0.5
    return {
        "x0": _w((lambda *s: torch.randn(*s, dtype=torch.bfloat16) * 0.05)(B, Din)),
        "U":  _w((lambda *s: torch.randn(*s, dtype=torch.bfloat16) * 1.6)(L, Din, R) * sc),
        "V":  _w((lambda *s: torch.randn(*s, dtype=torch.bfloat16) * 1.6)(L, R, Din) * sc),
        "bs": _w((lambda *s: torch.randn(*s, dtype=torch.bfloat16) * 0.05)(L, Din)),
    }

def reference(x0, U, V, bs):
    x = x0
    for l in range(U.shape[0]):
        h = torch.einsum('rd,bd->br', V[l], x)
        h = torch.einsum('dr,br->bd', U[l], h)
        x = x0 * (h + bs[l]) + x
    return x
```

```python
import sys, json

NAME = "standalone__cross_network_dcn_v2__recsys"

DEF = dict(
    LA=10,
    MAXOUT=14,
    BUD=7,
    BD=9,
    P1=[4, 2, 2],
    x_nt=False, w_nt=False, st_mod="",
    pf_w=False, pf_code=False,
    stamps=False,
    dma_every=1,
    skew=True,
)

V_PA = 8; V_PX = 12; V_VV = 28; V_VU = 32; V_VX = 36; V_HX = 40; V_LIN = 44
V_XP = 48; V_HACC = 96; V_ACC = 128
A_X0 = 0; A_BA = 128; A_BB = 144; A_POOL = 152; NPOOL = 26
S_X = 8; S_V = 12; S_U = 16; S_O = 20; S_B = 24
S_W = 28; S_MASK = 29; S_M = 32; S_VO = 40; S_UO = 48; S_XO = 56; S_ST = 64
HBUF = 65536; RING = 81920; RSZ = 20480; NSLOT = 5

def vr(b, n=1): return f"v{b}" if n == 1 else f"v[{b}:{b+n-1}]"
def ar(b, n=1): return f"a{b}" if n == 1 else f"a[{b}:{b+n-1}]"
def rr(r, n=1): return (vr if r[0] == 'v' else ar)(r[1], n)
def regs(r, n): return {f"{r[0]}{r[1]+i}" for i in range(n)}
def ACC(mt, j): return V_ACC + (mt * 2 + j) * 16
def HACC(j): return V_HACC + 16 * j
def XP(slot, t, j): return V_XP + 16 * slot + (t * 2 + j) * 4
XSLOT = [0, 1, 2, 0]
HSLOT = 2

class Ins:
    __slots__ = ("text", "kind", "rd", "wr", "needs", "tok", "vr", "vw")
    def __init__(s, text, kind, rd=(), wr=(), needs=(), tok=None, vr=None, vw=None):
        s.text = text; s.kind = kind; s.rd = set(rd); s.wr = set(wr); s.needs = list(needs); s.tok = tok
        s.vr = vr or {}; s.vw = vw or {}

class Em:
    def __init__(s, cfg):
        s.out = []; s.lgq = []; s.vmq = []; s.pend = {}; s.ntok = 0; s.cfg = cfg
        s.nwait = 0
    def tok(s):
        s.ntok += 1; return s.ntok
    def done(s, t): return t not in s.lgq and t not in s.vmq
    def ensure(s, toks):
        nl = nv = None
        for t in toks:
            if t in s.lgq:
                n = len(s.lgq) - 1 - s.lgq.index(t); nl = n if nl is None else min(nl, n)
            elif t in s.vmq:
                n = len(s.vmq) - 1 - s.vmq.index(t); nv = n if nv is None else min(nv, n)
        if nl is None and nv is None: return 0
        parts = []
        if nv is not None:
            assert nv <= 63
            parts.append(f"vmcnt({nv})"); s.vmq = s.vmq[len(s.vmq) - nv:]
        if nl is not None:
            assert nl <= 15
            parts.append(f"lgkmcnt({nl})"); s.lgq = s.lgq[len(s.lgq) - nl:]
        s.out.append(Ins("s_waitcnt " + " ".join(parts), "wait")); s.nwait += 1
        return 1
    def regtoks(s, rs):
        return [s.pend[r] for r in rs if r in s.pend and not s.done(s.pend[r])]
    def emit(s, ins):
        n = s.ensure(list(ins.needs) + s.regtoks(ins.rd | ins.wr))
        if ins.kind in ("ds_r", "ds_w"):
            if len(s.lgq) >= 15: n += s.ensure([s.lgq[0]])
            ins.tok = ins.tok or s.tok(); s.lgq.append(ins.tok)
        if ins.kind in ("dma", "vld", "vst"):
            if len(s.vmq) >= 63: n += s.ensure([s.vmq[0]])
            ins.tok = ins.tok or s.tok(); s.vmq.append(ins.tok)
        if ins.kind in ("ds_r", "vld"):
            for r in ins.wr: s.pend[r] = ins.tok
        s.out.append(ins)
        return n + 1
    def raw(s, text, kind="salu", rd=(), wr=()):
        return s.emit(Ins(text, kind, rd, wr))
    def comment(s, text): s.out.append(Ins("; " + text, "cmt"))

def states(ins):
    if ins.kind == "cmt" or ins.kind == "label": return 0
    if ins.kind == "nop": return int(ins.text.split()[1]) + 1
    return 1

def haz_need(out, ins):
    need = 0
    if ins.kind in ("cmt", "label", "nop", "wait"): return 0
    d = 0
    for p in reversed(out):
        if d >= 12: break
        req = 0
        if p.kind == "valu" and ins.kind == "mfma" and (p.wr & ins.rd): req = 2
        if p.kind == "mfma":
            if ins.kind == "valu" and (p.wr & (ins.rd | ins.wr)): req = 12
            if ins.kind in ("ds_w", "ds_r", "vst", "vld", "dma") and (p.wr & (ins.rd | ins.wr)): req = 12
            if ins.kind == "mfma":
                ab = ins.rd - ins.wr
                if p.wr & ab: req = 12
                if (p.wr & ins.wr) and p.wr != ins.wr: req = 12
        if p.kind == "salu" and "m0" in p.wr and ins.kind == "dma": req = 1
        if p.kind == "valu" and ins.kind in ("dma", "vld", "vst") and any(r[0] == 's' for r in p.wr & ins.rd): req = 5
        if p.kind == "valu" and ins.kind == "valu" and any(r[0] == 's' for r in p.wr & ins.rd): req = 2
        if p.kind == "valu" and ins.kind == "salu" and any(r[0] == 's' for r in p.wr & ins.rd): req = 2
        if p.kind == "valu" and ins.text.startswith("v_readfirstlane") and (p.wr & ins.rd): req = 1
        if p.kind == "vst" and ins.kind in ("valu", "ds_r", "vld") and (p.rd & ins.wr): req = 2
        if req > d: need = max(need, req - d)
        d += states(p)
    return need

def fix_hazards(lst):
    out = []; added = 0
    for ins in lst:
        need = haz_need(out, ins)
        if need:
            out.append(Ins(f"s_nop {need-1}", "nop")); added += 1
        out.append(ins)
    return out, added

def verify(lst):
    ver = {}
    for ins in lst:
        for r, lab in ins.vr.items():
            assert ver.get(r) == lab, f"version mismatch at '{ins.text}': {r} has {ver.get(r)} want {lab}"
        for r in ins.wr:
            if ins.kind == "mfma": ver[r] = (1 if ins.vw.get("init") else ver[r] + 1)
            else: ver[r] = ins.vw.get(r)

class Frag:
    def __init__(s, name, reg=None):
        s.name = name; s.reg = reg; s.first = None; s.last = None; s.tok = None
        s.addr = None; s.off = None; s.group = None; s.gate = None; s.due = None; s.fixed = reg is not None
        s.issued = False

class Group:
    def __init__(s, q, kind, l, soff):
        s.q = q; s.kind = kind; s.l = l; s.soff = soff; s.slot = q % NSLOT
        s.frags = []; s.toks = []; s.m0done = False
        for k in range(4):
            f = Frag(f"A{q}.{k}"); f.addr = V_PA + k; f.off = s.slot * 4096; f.group = s; s.frags.append(f)

class MF:
    def __init__(s, d, a, b, c=None, tag=""):
        s.d = d; s.a = a; s.b = b; s.c = c; s.tag = tag

def build(cfg):
    e = Em(cfg)
    R = e.raw
    def V(text, rd=(), wr=()): return e.emit(Ins(text, "valu", rd, wr))
    nt_x = " nt" if cfg["x_nt"] else ""
    nt_w = " nt" if cfg["w_nt"] else ""
    stamp_n = [0]
    def stamp():
        if cfg["stamps"]:
            k = stamp_n[0]; stamp_n[0] += 1
            assert k < 16
            R(f"s_memtime s[{S_ST+2*k}:{S_ST+2*k+1}]")
    groups = []; mf = []; reads = []
    xw_gate = {}
    def newgroup(kind, l, soff):
        g = Group(len(groups), kind, l, soff); groups.append(g); return g
    marks = {}
    hfr = {}
    xown0 = {}
    for l in range(3):
        marks[("G1", l)] = len(mf)
        def xb(i, half, s, j):
            mt = 2 * half + (s >> 1); t = s & 1
            if i == 0:
                f = Frag(f"X{l}.own.{mt}.{t}.{j}", ('v', XP(XSLOT[mt], t, j)))
                if l == 0:
                    f.addr = V_PX + s; f.off = half * 8192 + j * 4096; f.gate = ("X0", half); reads.append(f); xown0[(mt, t, j)] = f
                return f
            f = Frag(f"X{l}.{i}.{half}.{s}.{j}")
            f.addr = V_PX + 4 * i + s; f.off = half * 8192 + j * 4096
            f.gate = ("X0", half) if l == 0 else ("X", l, half); reads.append(f)
            return f
        first = [True, True]
        def g1steps(g, i, half, ss, skew=False):
            order = [(s, j) for s in ss for j in (0, 1)]
            if skew: order = [(s, j) for j in (0, 1) for s in ss]
            for s, j in order:
                c = None
                if first[j]: c = "0"; first[j] = False
                mf.append(MF(HACC(j), g.frags[s], xb(i, half, s, j), c, tag=f"G1.{l} i{i} h{half} s{s} j{j}"))
        if l == 0:
            seq = [(i, h) for h in (0, 1) for i in range(4)]
            for n, (i, h) in enumerate(seq):
                g = newgroup('V', l, S_VO + h * 4 + i)
                if h == 1 and i == 0:
                    marks["L0half"] = len(mf)
                    for mt in range(4):
                        for j in (0, 1):
                            mf.append(MF(ACC(mt, j), Frag("bA", ('a', A_BA + 4 * mt)), Frag("bB", ('a', A_BB + 0)), "1.0", tag=f"init {mt} {j}"))
                    marks["L0h1"] = len(mf)
                    for f in g.frags: f.gate = ("X0", 1)
                g1steps(g, i, h, range(4), skew=(n == 7 and cfg["skew"]))
        else:
            g00 = newgroup('V', l, S_VO + 0); g1steps(g00, 0, 0, range(4))
            g01 = newgroup('V', l, S_VO + 4); g1steps(g01, 0, 1, (0, 1))
            for i in (1, 2, 3):
                g = newgroup('V', l, S_VO + i); g1steps(g, i, 0, range(4))
            g1steps(g01, 0, 1, (2, 3))
            for i in (1, 2, 3):
                g = newgroup('V', l, S_VO + 4 + i); g1steps(g, i, 1, range(4), skew=(i == 3 and cfg["skew"]))
        marks[("G1end", l)] = len(mf)
        marks[("G2", l)] = len(mf)
        if l >= 1:
            boff = {1: 4, 2: 2}[l]
            for mt in range(4):
                for j in (0, 1):
                    mf.append(MF(ACC(mt, j), Frag("bA", ('a', A_BA + 4 * mt)), Frag("bB", ('a', A_BB + boff)), None, tag=f"bias{l} {mt} {j}"))
        H = {}
        for t in (0, 1):
            for j in (0, 1):
                H[(0, t, j)] = Frag(f"H{l}.own.{t}.{j}", ('v', XP(HSLOT, t, j)))
        for i in (1, 2, 3):
            for t in (0, 1):
                for j in (0, 1):
                    f = Frag(f"H{l}.{i}.{t}.{j}"); f.addr = V_HX + i; f.off = (t * 2 + j) * 1024; f.gate = ("H", l)
                    H[(i, t, j)] = f; reads.append(f)
        P1 = cfg["P1"][l]
        g0 = {}
        for mt in range(P1): g0[mt] = newgroup('U', l, S_UO + mt * 2)
        for j in (0, 1):
            for mt in range(P1):
                for t in (0, 1):
                    mf.append(MF(ACC(mt, j), g0[mt].frags[t], H[(0, t, j)], None, tag=f"G2.{l} own mt{mt} t{t} j{j}"))
        for mt in range(4):
            if mt >= P1:
                g0[mt] = newgroup('U', l, S_UO + mt * 2)
                for t in (0, 1):
                    for j in (0, 1):
                        mf.append(MF(ACC(mt, j), g0[mt].frags[t], H[(0, t, j)], None, tag=f"G2.{l} own mt{mt} t{t} j{j}"))
            for t in (0, 1):
                for j in (0, 1):
                    mf.append(MF(ACC(mt, j), g0[mt].frags[2 + t], H[(1, t, j)], None, tag=f"G2.{l} i1 mt{mt} t{t} j{j}"))
            g1 = newgroup('U', l, S_UO + mt * 2 + 1)
            for s in range(4):
                for j in (0, 1):
                    mf.append(MF(ACC(mt, j), g1.frags[s], H[(2 + (s >> 1), s & 1, j)], None, tag=f"G2.{l} i{2+(s>>1)} mt{mt} t{s&1} j{j}"))
            marks[("mtend", l, mt)] = len(mf) - 1
        hfr[l] = H
    N = len(mf)
    for k, m in enumerate(mf):
        for f in (m.a, m.b):
            if f.first is None: f.first = k
            f.last = k
    for g in groups:
        gf = min(f.first for f in g.frags)
        for s, f in enumerate(g.frags):
            f.due = min(f.first, gf + 2 * s) - cfg["LA"]; f.key = min(f.first, gf + 2 * s)
            reads.append(f)
    for f in reads:
        if f.group is None: f.due = f.first - cfg["LA"]; f.key = f.first
    reads.sort(key=lambda f: (f.key, f.group is None))
    pool = list(range(NPOOL))
    gates = set()

    tasks = []; prod = {}
    lastuse = {}
    for k, m in enumerate(mf):
        if m.b.fixed and m.b.reg[0] == 'v': lastuse[m.b.name] = k
    T = [0, 1, 2, 3, 4, 5, 6, 7]
    def t_unpack(mt, earliest):
        for t in (0, 1):
            for j in (0, 1):
                src = XP(XSLOT[mt], t, j)
                for q0 in (0, 2):
                    for q in (q0, q0 + 1):
                        tq = T[(q - q0) * 2]; tq1 = T[(q - q0) * 2 + 1]
                        tasks.append((earliest, Ins(f"v_lshlrev_b32 v{tq}, 16, v{src+q}", "valu", {f"v{src+q}"}, {f"v{tq}"}, vr={f"v{src+q}": f"X0.own.{mt}.{t}.{j}"})))
                        tasks.append((earliest, Ins(f"v_and_b32 v{tq1}, s{S_MASK}, v{src+q}", "valu", {f"v{src+q}"}, {f"v{tq1}"}, vr={f"v{src+q}": f"X0.own.{mt}.{t}.{j}"})))
                    for k in range(4):
                        a = A_X0 + (mt * 2 + j) * 16 + 8 * t + 2 * q0 + k
                        tasks.append((earliest, Ins(f"v_accvgpr_write_b32 a{a}, v{T[k]}", "valu", {f"v{T[k]}"}, {f"a{a}"}, vw={f"a{a}": "x0f"})))
    def t_hcvt(l, j, earliest):
        for t in (0, 1):
            dst = XP(HSLOT, t, j)
            for q in range(4):
                s0 = HACC(j) + 8 * t + 2 * q
                tasks.append((earliest, Ins(f"v_cvt_pk_bf16_f32 v{dst+q}, v{s0}, v{s0+1}", "valu", {f"v{s0}", f"v{s0+1}"}, {f"v{dst+q}"}, vr={f"v{s0}": 32, f"v{s0+1}": 32}, vw={f"v{dst+q}": f"H{l}.own.{t}.{j}"})))
            prod[f"H{l}.own.{t}.{j}"] = len(tasks)
            w = Ins(f"ds_write_b128 v{V_HX}, {vr(dst,4)} offset:{(t*2+j)*1024}", "ds_w", regs(('v', dst), 4) | {f"v{V_HX}"}, vr={r: f"H{l}.own.{t}.{j}" for r in regs(('v', dst), 4)})
            tasks.append((earliest, ("write", w, ("H", l))))
    def t_epi(l, mt, earliest):
        for t in (0, 1):
            for j in (0, 1):
                dst = XP(XSLOT[mt], t, j)
                for q0 in (0, 2):
                    for k in range(4):
                        a = A_X0 + (mt * 2 + j) * 16 + 8 * t + 2 * q0 + k
                        tasks.append((earliest, Ins(f"v_accvgpr_read_b32 v{T[k]}, a{a}", "valu", {f"a{a}"}, {f"v{T[k]}"}, vr={f"a{a}": "x0f"})))
                    for k in range(4):
                        c = ACC(mt, j) + 8 * t + 2 * q0 + k
                        tasks.append((earliest, Ins(f"v_mul_f32 v{T[k]}, v{T[k]}, v{c}", "valu", {f"v{T[k]}", f"v{c}"}, {f"v{T[k]}"}, vr={f"v{c}": 9 * (l + 1)})))
                    for k in (0, 1):
                        tasks.append((earliest, Ins(f"v_cvt_pk_bf16_f32 v{dst+q0+k}, v{T[2*k]}, v{T[2*k+1]}", "valu", {f"v{T[2*k]}", f"v{T[2*k+1]}"}, {f"v{dst+q0+k}"}, vw={f"v{dst+q0+k}": f"X{l+1}.own.{mt}.{t}.{j}"})))
                prod[f"X{l+1}.own.{mt}.{t}.{j}"] = len(tasks)
                s = 2 * (mt & 1) + t
                w = Ins(f"ds_write_b128 v{V_PX+s}, {vr(dst,4)} offset:{(mt>>1)*8192 + j*4096}", "ds_w", regs(('v', dst), 4) | {f"v{V_PX+s}"}, vr={r: f"X{l+1}.own.{mt}.{t}.{j}" for r in regs(('v', dst), 4)})
                tasks.append((earliest, ("write", w, ("X", l + 1, mt >> 1))))
    t_unpack(0, xown0[(0, 1, 1)].first + 1)
    t_unpack(1, xown0[(1, 1, 1)].first + 1)
    t_unpack(2, xown0[(2, 1, 1)].first + 1)
    u3_idx = len(tasks)
    t_unpack(3, xown0[(3, 1, 1)].first + 1)
    u3 = tasks[u3_idx:]; del tasks[u3_idx:]
    for l in range(3):
        lastj = {}
        for k in range(marks[("G1", l)], marks[("G1end", l)]):
            for j in (0, 1):
                if mf[k].d == HACC(j): lastj[j] = k
        prio_start = len(tasks)
        t_hcvt(l, 0, lastj[0] + 1); t_hcvt(l, 1, lastj[1] + 1)
        marks[("hcvt", l)] = (prio_start, len(tasks))
        if l == 0: tasks.extend(u3)
        for mt in range(4):
            ea = marks[("mtend", l, mt)] + 2
            if XSLOT[mt] == HSLOT: ea = max(ea, max(lastuse[f"H{l}.own.{t}.{j}"] for t in (0, 1) for j in (0, 1)) + 1)
            if mt == 3 and l < 2: ea = max(ea, lastuse[f"X{l+1}.own.0.1.1"] + 1)
            t_epi(l, mt, ea)
    wcount = {}
    for _, x in tasks:
        if isinstance(x, tuple): wcount[x[2]] = wcount.get(x[2], 0) + 1
    wdone = {k: [] for k in wcount}

    R("s_cmp_ge_u32 s2, 256"); R("s_cbranch_scc1 L_END")
    stamp()
    R("s_load_dwordx8 s[36:43], s[0:1], 0"); R("s_load_dwordx2 s[44:45], s[0:1], 32")
    if cfg["stamps"]: R("s_load_dwordx2 s[46:47], s[0:1], 40")
    V("v_lshrrev_b32 v2, 6, v0", {"v0"}, {"v2"})
    V("v_and_b32 v1, 63, v0", {"v0"}, {"v1"})
    V(f"v_readfirstlane_b32 s{S_W}, v2", {"v2"}, {f"s{S_W}"})
    V("v_lshrrev_b32 v3, 3, v1", {"v1"}, {"v3"})
    V("v_and_b32 v4, 7, v1", {"v1"}, {"v4"})
    V("v_xor_b32 v5, v3, v4", {"v3", "v4"}, {"v5"})
    V("v_lshlrev_b32 v5, 4, v5", {"v5"}, {"v5"})
    V("v_xor_b32 v6, 16, v5", {"v5"}, {"v6"})
    V("v_lshlrev_b32 v7, 10, v3", {"v3"}, {"v7"})
    V("v_lshl_add_u32 v7, v2, 8, v7", {"v2", "v7"}, {"v7"})
    for i in range(4):
        c = 5 + (i >> 1)
        V(f"v_add_u32 v{V_VX+i}, v7, v{c}", {"v7", f"v{c}"}, {f"v{V_VX+i}"})
        if i: V(f"v_add_u32 v{V_VX+i}, {i*7168}, v{V_VX+i}", {f"v{V_VX+i}"}, {f"v{V_VX+i}"})
    V("v_and_b32 v4, 4, v3", {"v3"}, {"v4"})
    V("v_add_u32 v3, v3, v4", {"v3", "v4"}, {"v3"})
    V("v_lshl_add_u32 v7, v2, 5, v3", {"v2", "v3"}, {"v7"})
    V("v_lshlrev_b32 v7, 10, v7", {"v7"}, {"v7"})
    for i in range(4):
        c = 5 + (i >> 1); k = (16 * (i >> 1) + 4 * (i & 1) - i) * 1024
        V(f"v_add_u32 v{V_VV+i}, v7, v{c}", {"v7", f"v{c}"}, {f"v{V_VV+i}"})
        if k: V(f"v_add_u32 v{V_VV+i}, {k}, v{V_VV+i}", {f"v{V_VV+i}"}, {f"v{V_VV+i}"})
    R("s_lshl_b32 s3, s2, 16")
    R(f"s_lshl_b32 s30, s{S_W}, 14", rd={f"s{S_W}"})
    R(f"s_mul_i32 s31, s{S_W}, {RSZ}", rd={f"s{S_W}"})
    for k in range(NSLOT): R(f"s_add_u32 s{S_M+k}, s31, {RING + k*4096}") if S_M + k < 36 else None
    R("s_waitcnt lgkmcnt(0)", "wait")
    R(f"s_add_u32 s{S_X}, s36, s3"); R(f"s_addc_u32 s{S_X+1}, s37, 0"); R(f"s_mov_b32 s{S_X+2}, 65536"); R(f"s_mov_b32 s{S_X+3}, 0x20000")
    R(f"s_mov_b32 s{S_V}, s40"); R(f"s_mov_b32 s{S_V+1}, s41"); R(f"s_mov_b32 s{S_V+2}, 131072"); R(f"s_mov_b32 s{S_V+3}, 0x20000")
    R(f"s_mov_b32 s{S_U}, s38"); R(f"s_mov_b32 s{S_U+1}, s39"); R(f"s_mov_b32 s{S_U+2}, 131072"); R(f"s_mov_b32 s{S_U+3}, 0x20000")
    R(f"s_mov_b32 s{S_B}, s42"); R(f"s_mov_b32 s{S_B+1}, s43"); R(f"s_mov_b32 s{S_B+2}, 3072"); R(f"s_mov_b32 s{S_B+3}, 0x20000")
    R(f"s_add_u32 s{S_O}, s44, s3"); R(f"s_addc_u32 s{S_O+1}, s45, 0"); R(f"s_mov_b32 s{S_O+2}, 65536"); R(f"s_mov_b32 s{S_O+3}, 0x20000")
    if cfg["stamps"]:
        R("s_mov_b32 s4, s46"); R("s_mov_b32 s5, s47"); R("s_mov_b32 s6, 256"); R("s_mov_b32 s7, 0x20000")
    R(f"s_add_u32 s{S_M+4}, s31, {RING + 4*4096}")
    for h in (0, 1):
        for j in (0, 1): R(f"s_mov_b32 s{S_XO+h*2+j}, {j*32768 + h*128}")
    for i in range(4):
        R(f"s_xor_b32 s3, s{S_W}, {i}"); R(f"s_lshl_b32 s{S_VO+i}, s3, 8"); R(f"s_add_u32 s{S_VO+4+i}, s{S_VO+i}, 128")

    xtoks = {0: [], 1: []}
    def x_dma(h, n):
        j = n >> 2; i = n & 3
        R(f"s_add_u32 m0, s30, {h*8192 + j*4096}", wr={"m0"})
        ins = Ins(f"buffer_load_dwordx4 v{V_VX+i}, s[{S_X}:{S_X+3}], s{S_XO+h*2+j} offen offset:{i*1024}{nt_x} lds", "dma", {f"v{V_VX+i}"})
        e.emit(ins); xtoks[h].append(ins.tok)
    cur_m0 = [None]
    def w_dma(g, setm0=False):
        n = 0
        i = len(g.toks)
        if i == 0 and g.q % 8 == 0 and g.l > 0:
            srd = S_V if g.kind == 'V' else S_U
            n += R(f"s_add_u32 s{srd}, s{srd}, 131072"); n += R(f"s_addc_u32 s{srd+1}, s{srd+1}, 0")
        if setm0 or i == 0:
            n += R(f"s_mov_b32 m0, s{S_M+g.slot}", wr={"m0"})
            return n + w_dma2(g)
        return n + w_dma2(g)
    def w_dma2(g):
        i = len(g.toks)
        vo = (V_VV if g.kind == 'V' else V_VU) + i; srd = S_V if g.kind == 'V' else S_U
        needs = []
        if g.q >= NSLOT: needs = [f.tok for f in groups[g.q - NSLOT].frags]
        ins = Ins(f"buffer_load_dwordx4 v{vo}, s[{srd}:{srd+3}], s{g.soff} offen offset:{i*1024}{nt_w} lds", "dma", {f"v{vo}"}, needs=needs)
        n = e.emit(ins); g.toks.append(ins.tok); return n
    for n in range(8):
        x_dma(0, n)
        g = groups[n // 2]
        w_dma(g, setm0=True); w_dma(g)
        if n == 0:
            V("v_lshl_add_u32 v7, v2, 7, v3", {"v2", "v3"}, {"v7"})
            V("v_lshlrev_b32 v7, 8, v7", {"v7"}, {"v7"})
            V("v_and_b32 v4, 1, v2", {"v2"}, {"v4"})
            V("v_lshlrev_b32 v4, 6, v4", {"v4"}, {"v4"})
            V("v_xor_b32 v5, v5, v4", {"v5", "v4"}, {"v5"})
            V("v_xor_b32 v6, v6, v4", {"v6", "v4"}, {"v6"})
            for i in range(4):
                c = 5 + (i >> 1); k = (16 * (i >> 1) + 4 * (i & 1)) * 256 - i * 1024
                V(f"v_add_u32 v{V_VU+i}, v7, v{c}", {"v7", f"v{c}"}, {f"v{V_VU+i}"})
                if k: V(f"v_add_u32 v{V_VU+i}, {k}, v{V_VU+i}", {f"v{V_VU+i}"}, {f"v{V_VU+i}"})
        if n == 1:
            V("v_and_b32 v3, 31, v1", {"v1"}, {"v3"})
            V("v_lshrrev_b32 v4, 4, v3", {"v3"}, {"v4"})
            V("v_and_b32 v5, 7, v3", {"v3"}, {"v5"})
            V("v_xor_b32 v4, v4, v5", {"v4", "v5"}, {"v4"})
            V("v_lshrrev_b32 v5, 5, v1", {"v1"}, {"v5"})
            V("v_xor_b32 v4, v4, v5", {"v4", "v5"}, {"v4"})
            V("v_lshlrev_b32 v4, 4, v4", {"v4"}, {"v4"})
            V("v_lshl_add_u32 v4, v3, 7, v4", {"v3", "v4"}, {"v4"})
            R(f"s_mov_b32 s{S_MASK}, 0xffff0000")
            for s in range(4):
                V(f"v_xor_b32 v6, {s*32}, v4", {"v4"}, {"v6"})
                V(f"v_add_u32 v{V_PA+s}, s{S_M}, v6", {"v6"}, {f"v{V_PA+s}"})
                V(f"v_add_u32 v{V_PX+s}, s30, v6", {"v6"}, {f"v{V_PX+s}"})
                for i in (1, 2, 3):
                    V(f"v_xor_b32 v{V_PX+4*i+s}, {i*16384}, v{V_PX+s}", {f"v{V_PX+s}"}, {f"v{V_PX+4*i+s}"})
        if n == 2:
            V("v_lshlrev_b32 v4, 4, v1", {"v1"}, {"v4"})
            V(f"v_add_u32 v{V_LIN}, s30, v4", {"v4"}, {f"v{V_LIN}"})
            V("v_lshl_add_u32 v4, v2, 12, v4", {"v2", "v4"}, {"v4"})
            V(f"v_add_u32 v{V_HX}, {HBUF}, v4", {"v4"}, {f"v{V_HX}"})
            for i in (1, 2, 3):
                V(f"v_xor_b32 v{V_HX+i}, {i*4096}, v{V_HX}", {f"v{V_HX}"}, {f"v{V_HX+i}"})
            R(f"s_lshr_b32 s3, s{S_W}, 1"); R("s_lshl_b32 s3, s3, 7")
            for mt in range(4):
                R(f"s_add_u32 s{S_UO+2*mt}, s3, {mt*8192}"); R(f"s_xor_b32 s{S_UO+2*mt+1}, s{S_UO+2*mt}, 128")
        if n == 3:
            V("v_lshrrev_b32 v4, 4, v1", {"v1"}, {"v4"})
            V("v_lshlrev_b32 v4, 10, v4", {"v4"}, {"v4"})
            V("v_and_b32 v5, 15, v1", {"v1"}, {"v5"})
            V("v_lshl_add_u32 v4, v5, 4, v4", {"v5", "v4"}, {"v4"})
            V("v_lshl_add_u32 v45, v2, 8, v4", {"v2", "v4"}, {"v45"})
            V("v_and_b32 v4, 0x13, v3", {"v3"}, {"v4"})
            V("v_and_b32 v5, 4, v3", {"v3"}, {"v5"})
            V("v_lshl_add_u32 v4, v5, 1, v4", {"v5", "v4"}, {"v4"})
            V("v_and_b32 v5, 8, v3", {"v3"}, {"v5"})
            V("v_lshrrev_b32 v5, 1, v5", {"v5"}, {"v5"})
            V("v_add_u32 v4, v4, v5", {"v4", "v5"}, {"v4"})
            V("v_lshlrev_b32 v4, 1, v4", {"v4"}, {"v4"})
            V("v_lshl_add_u32 v4, v2, 12, v4", {"v2", "v4"}, {"v4"})
            V("v_lshrrev_b32 v5, 5, v1", {"v1"}, {"v5"})
            V("v_lshl_add_u32 v4, v5, 8, v4", {"v5", "v4"}, {"v4"})
            V(f"v_add_u32 v46, {HBUF}, v4", {"v4"}, {"v46"})
            V("v_mul_u32_u24 v5, 0x3f80, v5", {"v5"}, {"v5"})
            V("v_sub_u32 v6, 0x3f80, v5", {"v5"}, {"v6"})
            for k in range(8):
                src = {0: "v6", 4: "v5"}.get(k, "0")
                V(f"v_accvgpr_write_b32 a{A_BB+k}, {src}", {src} if src != "0" else (), {f"a{A_BB+k}"})
            for mt in range(4):
                for k in (1, 3): V(f"v_accvgpr_write_b32 a{A_BA+4*mt+k}, 0", (), {f"a{A_BA+4*mt+k}"})
    R(f"s_lshl_b32 s3, s{S_W}, 12"); R(f"s_add_u32 m0, s3, {HBUF}", wr={"m0"})
    bins = Ins(f"buffer_load_dwordx4 v45, s[{S_B}:{S_B+3}], 0 offen lds", "dma", {"v45"}); e.emit(bins)
    for n in range(8):
        x_dma(1, n)
        if n < 4: w_dma(groups[4], setm0=True)
    stamp()
    e.ensure(xtoks[0] + groups[0].toks)
    stamp()
    R("s_barrier", "barrier"); gates.add(("X0", 0))
    nextdma = [5]

    def can_issue(f, g):
        if f.gate is not None and f.gate not in gates: return False
        if f.group is not None and len(f.group.toks) < 4: return False
        if not f.fixed and not pool: return False
        return True
    def issue_read(f):
        if not f.fixed:
            k = pool.pop(0); f.reg = ('a', A_POOL + 4 * k); f.pk = k
        needs = list(f.group.toks) if f.group is not None else []
        ins = Ins(f"ds_read_b128 {rr(f.reg,4)}, v{f.addr} offset:{f.off}", "ds_r", {f"v{f.addr}"}, regs(f.reg, 4), needs, vw={r: f.name for r in regs(f.reg, 4)})
        n = e.emit(ins); f.tok = ins.tok; f.issued = True
        return n
    rp = [0]
    def do_reads(g, maxn):
        n = 0; cnt = 0
        k = rp[0]
        while k < len(reads) and cnt < maxn:
            f = reads[k]
            if f.issued:
                if k == rp[0]: rp[0] += 1
                k += 1; continue
            if f.due > g: break
            if len(e.lgq) >= cfg["MAXOUT"]: break
            if can_issue(f, g):
                n += issue_read(f); cnt += 1
            elif not f.fixed and not pool: break
            k += 1
        return n
    def mf_ins(m):
        for f in (m.a, m.b):
            assert f.reg is not None, (m.tag, f.name)
        d = regs(('v', m.d), 16)
        c = m.c if m.c else vr(m.d, 16)
        rd = regs(m.a.reg, 4) | regs(m.b.reg, 4) | (d if not m.c else set())
        vrr = {}
        for f in (m.a, m.b):
            if f.name not in ("bA", "bB"):
                for r in regs(f.reg, 4): vrr[r] = f.name
        return Ins(f"v_mfma_f32_32x32x16_bf16 {vr(m.d,16)}, {rr(m.a.reg,4)}, {rr(m.b.reg,4)}, {c}", "mfma", rd, d, vr=vrr, vw={"init": bool(m.c)})
    def force_reads_for(k):
        n = 0
        for f in (mf[k].a, mf[k].b):
            if f.addr is not None and not f.issued:
                if f.gate is not None and f.gate not in gates: n += force_gate(f.gate, k)
                if f.group is not None:
                    while len(f.group.toks) < 4:
                        assert f.group.q == nextdma[0], (f.name, nextdma[0])
                        assert False, "forced dma"
                    if nextdma[0] == f.group.q: nextdma[0] += 1
                n += issue_read(f)
                stats["forced_reads"] += 1
        return n
    tp = [0]
    pendw = []
    def run_task(g):
        if tp[0] >= len(tasks): return 0
        ea, x = tasks[tp[0]]
        if ea > g: return 0
        if isinstance(x, tuple):
            tp[0] += 1; pendw.append(x); return -1
        tp[0] += 1
        return e.emit(x)
    def flush_writes(g):
        n = 0
        while pendw and len(e.lgq) < 15:
            _, w, gate = pendw.pop(0)
            n += e.emit(w); wdone[gate].append((g, w.tok))
        return n
    barrier_gap = {}
    def place_barrier(gate, g):
        n = e.ensure([t for _, t in wdone[gate]])
        n += R("s_barrier", "barrier"); gates.add(gate); barrier_gap[gate] = g
        return n
    def force_gate(gate, g):
        n = 0
        if gate == ("X0", 1):
            stamp()
            n += e.ensure(xtoks[1]); stamp(); n += R("s_barrier", "barrier"); gates.add(gate); barrier_gap[gate] = g
            return n
        while len(wdone[gate]) < wcount[gate]:
            r = run_task(10**9) if not pendw else -1
            assert r != 0
            n += max(r, 0)
            if pendw and len(e.lgq) >= 15: n += e.ensure([e.lgq[0]])
            n += flush_writes(g)
        stats["forced_gates"] += 1
        return n + place_barrier(gate, g)
    stats = dict(forced_reads=0, forced_gates=0, over=0, forced_tasks=[])
    gate_first = {}
    for f in reads:
        if f.gate is not None: gate_first[f.gate] = min(gate_first.get(f.gate, 10**9), f.first)
    outs = []
    out_state = {0: 0, 1: 0}
    out_reads = []
    def do_output(g, final=False):
        n = 0
        for half in (0, 1):
            gate = ("X", 3, half)
            if len(wdone[gate]) == wcount[gate] and out_state[half] < 8 and pool and (g < 0 or len(e.lgq) < cfg["MAXOUT"]):
                k = out_state[half]; out_state[half] += 1
                j = k >> 2; i = k & 3
                pk = pool.pop(0); reg = ('a', A_POOL + 4 * pk)
                ins = Ins(f"ds_read_b128 {rr(reg,4)}, v{V_LIN} offset:{half*8192 + j*4096 + i*1024}", "ds_r", {f"v{V_LIN}"}, regs(reg, 4))
                n += e.emit(ins); out_reads.append((g, reg, half, j, i)); break
        while out_reads and (final or out_reads[0][0] + 4 <= g):
            _, reg, half, j, i = out_reads.pop(0)
            so = f"s{S_XO+1}" if j else "0"
            n += e.emit(Ins(f"buffer_store_dwordx4 {rr(reg,4)}, v{V_VX+i}, s[{S_O}:{S_O+3}], {so} offen offset:{i*1024 + half*128}{cfg['st_mod']}", "vst", regs(reg, 4) | {f"v{V_VX+i}"}))
            if not final: break
        return n

    do_reads(0, 8)
    slots = []
    bias_state = [0]
    for g in range(N):
        m = mf[g]
        force_reads_for(g)
        if m.b.name in prod:
            nf = 0
            while tp[0] < prod[m.b.name]:
                r = run_task(10**9); nf += max(r, 0)
                if pendw: nf += flush_writes(g)
            if nf: stats["forced_tasks"].append((g, nf))
        e.emit(mf_ins(m))
        for f in (m.a, m.b):
            if not f.fixed and f.last == g: pool.append(f.pk)
        if cfg["stamps"] and g in (marks[("G2", 0)], marks[("G1", 1)], marks[("G2", 1)], marks[("G1", 2)], marks[("G2", 2)], N - 1): stamp()
        n = 0
        if g + 1 < N:
            nx = mf[g + 1]
            need = [f.tok for f in (nx.a, nx.b) if f.tok and not e.done(f.tok)]
            if need:
                if g + 2 < N: need += [f.tok for f in (mf[g + 2].a, mf[g + 2].b) if f.tok]
                n += e.ensure(need)
        if nextdma[0] < len(groups) and not groups[nextdma[0]].m0done:
            gq = groups[nextdma[0]]
            if gq.q % 8 == 0 and gq.l > 0:
                srd = S_V if gq.kind == 'V' else S_U
                n += R(f"s_add_u32 s{srd}, s{srd}, 131072"); n += R(f"s_addc_u32 s{srd+1}, s{srd+1}, 0")
            n += R(f"s_mov_b32 m0, s{S_M+gq.slot}", wr={"m0"}); gq.m0done = True
        n += flush_writes(g)
        for gate in wcount:
            if gate in gates or gate[0] == "X" and gate[1] == 3: continue
            if len(wdone[gate]) == wcount[gate] and (g >= wdone[gate][-1][0] + cfg["BD"] or gate_first[gate] - g <= 4):
                n += place_barrier(gate, g)
        if g == marks["L0h1"] - 2 and ("X0", 1) not in gates:
            n += force_gate(("X0", 1), g)
        if g >= 12 and bias_state[0] < 8 and len(e.lgq) < cfg["MAXOUT"] - 2:
            k = bias_state[0]; bias_state[0] += 1
            mt = k % 4; l = k // 4
            a = A_BA + 4 * mt + 2 * l
            n += e.emit(Ins(f"ds_read_u16 a{a}, v46 offset:{l*256 + mt*64}", "ds_r", {"v46"}, {f"a{a}"}, [bins.tok]))
        urgent = any((not f.issued) and f.first - g <= 4 for f in reads[rp[0]:rp[0] + 4])
        n += do_reads(g, 3 if urgent else 2)
        if nextdma[0] < len(groups) and g % cfg["dma_every"] == 0:
            gq = groups[nextdma[0]]
            prev = groups[gq.q - NSLOT]
            if gq.m0done and all(f.issued and e.done(f.tok) for f in prev.frags):
                n += w_dma2(gq)
                if len(gq.toks) == 4: nextdma[0] += 1
        if g >= marks[("G2", 2)]: n += do_output(g)
        while n < cfg["BUD"] and tp[0] < len(tasks):
            ea, x = tasks[tp[0]]
            if ea <= g and not isinstance(x, tuple):
                hz = haz_need(e.out, x)
                if hz:
                    k = min(hz, cfg["BUD"] - n)
                    e.out.append(Ins(f"s_nop {k-1}", "nop")); n += k
                    continue
            r = run_task(g)
            if r == 0: break
            if r > 0: n += r
        slots.append(n)
    g = N
    while tp[0] < len(tasks) or pendw:
        run_task(10**9)
        if pendw and len(e.lgq) >= 15: e.ensure([e.lgq[0]])
        flush_writes(g)
        if not tp[0] % 10: do_output(g); g += 1
    stamp()
    while out_state[1] < 8 or out_state[0] < 8:
        assert pool
        do_output(-100)
    do_output(g, final=True)
    if cfg["stamps"]:
        stamp()
        R("s_waitcnt vmcnt(0)", "wait"); stamp()
        R("s_waitcnt lgkmcnt(0)", "wait")
        R("s_cmp_lg_u32 s2, 0"); R("s_cbranch_scc1 L_END")
        for k in range(16):
            if k < stamp_n[0]:
                R(f"s_sub_u32 s3, s{S_ST+2*k}, s{S_ST}"); V(f"v_mov_b32 v{8+k}, s3", (), {f"v{8+k}"})
            else: V(f"v_mov_b32 v{8+k}, 0", (), {f"v{8+k}"})
        V("v_mov_b32 v1, 0", (), {"v1"})
        R(f"s_lshl_b32 s3, s{S_W}, 6")
        for k in range(4):
            e.emit(Ins(f"buffer_store_dwordx4 v[{8+4*k}:{11+4*k}], v1, s[4:7], s3 offen offset:{16*k}", "vst", regs(('v', 8 + 4 * k), 4) | {"v1"}))
    assert all(f.issued for f in reads) and nextdma[0] == len(groups) and bias_state[0] == 8
    verify(e.out)
    lst, nops = fix_hazards(e.out)
    stats.update(nops=nops, waits=e.nwait, N=N, ninst=sum(1 for x in lst if x.kind != "cmt"), barriers={str(k): v for k, v in barrier_gap.items()},
                 marks={str(k): v for k, v in marks.items()}, over=sum(max(0, s - cfg["BUD"]) for s in slots))
    return lst, slots, stats

HEADER = """; Kernarg layout for this problem (56 bytes, ptrs only, base s[0:1]):
; @launch grid=(256,1,1) block=(256,1,1) lds=163840
.amdgcn_target "amdgcn-amd-amdhsa--gfx950"
.text
.globl NAME_kernel
.p2align 8
.type NAME_kernel,@function
NAME_kernel:
"""
FOOTER = """L_END:
s_endpgm
.section .rodata,"a"
.p2align 6
.amdhsa_kernel NAME_kernel
  .amdhsa_next_free_vgpr 512
  .amdhsa_next_free_sgpr 102
  .amdhsa_accum_offset 256
  .amdhsa_group_segment_fixed_size 0
  .amdhsa_kernarg_size 56
  .amdhsa_user_sgpr_count 2
  .amdhsa_user_sgpr_kernarg_segment_ptr 1
  .amdhsa_system_sgpr_workgroup_id_x 1
.end_amdhsa_kernel
"""
def generate(path, **over):
    cfg = dict(DEF); cfg.update(over)
    lst, slots, stats = build(cfg)
    body = "\n".join(("    " if x.kind != "label" else "") + x.text for x in lst)
    open(path, "w").write(HEADER.replace("NAME", NAME) + body + "\n" + FOOTER.replace("NAME", NAME))
    return slots, stats

if __name__ == "__main__":
    path = sys.argv[1]
    over = json.loads(sys.argv[2]) if len(sys.argv) > 2 else {}
    slots, stats = generate(path, **over)
    print(stats)
    for k in range(0, len(slots), 32): print(k, "".join(str(min(s, 9)) if s < 10 else "X" for s in slots[k:k+32]))
```
